```python
import torch

def _softmax(x, axis=-1):
    return torch.softmax(x, dim=axis)
def _gelu(x):
    return torch.nn.functional.gelu(x, approximate="tanh")
def _silu(x):
    return torch.nn.functional.silu(x)
def _sigmoid(x):
    return torch.sigmoid(x)
def _layernorm(x, axis=-1, eps=1e-5):
    m = x.mean(dim=axis, keepdim=True)
    v = x.var(dim=axis, keepdim=True, unbiased=False)
    return (x - m) / torch.sqrt(v + eps)
def _scatter_add(tgt, idx, src, axis=0):
    return tgt.clone().index_add_(axis, idx, src)
def _segment_sum(src, seg, n):
    out = torch.zeros((n,) + src.shape[1:], dtype=src.dtype)
    return out.index_add_(0, seg, src)
def _pad(x, pw):
    flat = tuple(v for pair in reversed(pw) for v in pair)
    return torch.nn.functional.pad(x, flat)

kernel_name = 'concat_heads__sliding_block_cached__sliding_block_cached__decode'

def setup_inputs():

    _w = (lambda a: (lambda t: t.to(torch.bfloat16) if t.is_floating_point() else t)(torch.as_tensor(a)))
    def _A_setup():
        B, Sq, D = 8, 1, 512
        Hq, Hkv, Sk, Dh = 32, 8, 8192, 128
        assert Hq % Hkv == 0, (Hq, Hkv)
        return {
            "x": _w((lambda *s: torch.randn(*s, dtype=torch.bfloat16) * 0.8)(B, Sq, D)),
            "k_cache": _w((lambda *s: torch.randn(*s, dtype=torch.bfloat16) * 0.8)(B, Hkv, Sk, Dh)),
            "v_cache": _w((lambda *s: torch.randn(*s, dtype=torch.bfloat16) * 0.05)(B, Hkv, Sk, Dh)),
            "wq": _w((lambda *s: torch.randn(*s, dtype=torch.bfloat16) * 0.8)(D, Hq * Dh) * (D ** -0.5)),
            "wo": _w((lambda *s: torch.randn(*s, dtype=torch.bfloat16) * 0.05)(Hq * Dh, D) * ((Hq * Dh) ** -0.5)),
        }
    _A_in = _A_setup()

    def _B_setup():
        B, Sq, D = 8, 1, 512
        Hq, Hkv, Sk, Dh = 32, 8, 8192, 128
        assert Hq % Hkv == 0, (Hq, Hkv)
        return {
            "x": _w((lambda *s: torch.randn(*s, dtype=torch.bfloat16) * 0.8)(B, Sq, D)),
            "k_cache": _w((lambda *s: torch.randn(*s, dtype=torch.bfloat16) * 0.8)(B, Hkv, Sk, Dh)),
            "v_cache": _w((lambda *s: torch.randn(*s, dtype=torch.bfloat16) * 0.05)(B, Hkv, Sk, Dh)),
            "wq": _w((lambda *s: torch.randn(*s, dtype=torch.bfloat16) * 0.8)(D, Hq * Dh) * (D ** -0.5)),
            "wo": _w((lambda *s: torch.randn(*s, dtype=torch.bfloat16) * 0.05)(Hq * Dh, D) * ((Hq * Dh) ** -0.5)),
        }
    _B_in = _B_setup()

    return {
        "A_x": _A_in["x"],
        "A_k_cache": _A_in["k_cache"],
        "A_v_cache": _A_in["v_cache"],
        "A_wq": _A_in["wq"],
        "A_wo": _A_in["wo"],
        "B_x": _B_in["x"],
        "B_k_cache": _B_in["k_cache"],
        "B_v_cache": _B_in["v_cache"],
        "B_wq": _B_in["wq"],
        "B_wo": _B_in["wo"],
    }

def reference(A_x, A_k_cache, A_v_cache, A_wq, A_wo, B_x, B_k_cache, B_v_cache, B_wq, B_wo):
    def _A_ref(x, k_cache, v_cache, wq, wo):
        B, Sq, D = x.shape
        Hq, Dh = 32, 128
        Hkv, Sk = k_cache.shape[1], k_cache.shape[2]
        W = min(4096, max(256, Sk // 4))
        rep = Hq // Hkv
        q = (lambda x, *d: x.permute(*d))((x @ wq).reshape(B, Sq, Hq, Dh), 0, 2, 1, 3)
        k = (lambda x, n, axis: torch.repeat_interleave(x, n, dim=axis))(k_cache[:, :, Sk - W:, :], rep, axis=1)
        v = (lambda x, n, axis: torch.repeat_interleave(x, n, dim=axis))(v_cache[:, :, Sk - W:, :], rep, axis=1)
        scores = torch.einsum("bhqd,bhkd->bhqk", q, k) * (Dh ** -0.5)
        p = _softmax(scores, axis=-1)
        o = torch.einsum("bhqk,bhkd->bhqd", p, v)
        return (lambda x, *d: x.permute(*d))(o, 0, 2, 1, 3).reshape(B, Sq, Hq * Dh) @ wo

    def _B_ref(x, k_cache, v_cache, wq, wo):
        B, Sq, D = x.shape
        Hq, Dh = 32, 128
        Hkv, Sk = k_cache.shape[1], k_cache.shape[2]
        W = min(4096, max(256, Sk // 4))
        rep = Hq // Hkv
        q = (lambda x, *d: x.permute(*d))((x @ wq).reshape(B, Sq, Hq, Dh), 0, 2, 1, 3)
        k = (lambda x, n, axis: torch.repeat_interleave(x, n, dim=axis))(k_cache[:, :, Sk - W:, :], rep, axis=1)
        v = (lambda x, n, axis: torch.repeat_interleave(x, n, dim=axis))(v_cache[:, :, Sk - W:, :], rep, axis=1)
        scores = torch.einsum("bhqd,bhkd->bhqk", q, k) * (Dh ** -0.5)
        p = _softmax(scores, axis=-1)
        o = torch.einsum("bhqk,bhkd->bhqd", p, v)
        return (lambda x, *d: x.permute(*d))(o, 0, 2, 1, 3).reshape(B, Sq, Hq * Dh) @ wo

    a = _A_ref(A_x, A_k_cache, A_v_cache, A_wq, A_wo)
    b = _B_ref(B_x, B_k_cache, B_v_cache, B_wq, B_wo)
    return torch.concatenate([a, b], axis=-1)
```

```python
import sys, struct
KN = "concat_heads__sliding_block_cached__sliding_block_cached__decode_kernel"
HEADER = open("concat_heads__sliding_block_cached__sliding_block_cached__decode.s.ref").read().split("; Override launch")[0]

def f32bits(x): return struct.unpack("<I", struct.pack("<f", x))[0]

BLK = 0x20000
LDS_QP = 0; LDS_QS = 16384; LDS_STAT = 17408; LDS_AX = 18432; LDS_TOTAL = 22528
K_, V_, WQ_, WO_, X_, WS_, OUT_, DBG_ = 28, 32, 36, 40, 44, 48, 52, 56
def srd(r): return f"s[{r}:{r+3}]"
def vr(a, n): return f"v[{a}:{a+n-1}]" if n > 1 else f"v{a}"

class G:
    def __init__(s, W=4, N1=6, stamps=False, FSLOT=22, ASLOT=10, nt="nt", wnt="nt", spin=20000):
        s.L = []; s.W = W; s.N1 = N1; s.stamps = stamps; s.FSLOT = FSLOT; s.ASLOT = ASLOT; s.nt = nt; s.wnt = wnt
        s.ops = []
        s.nst = 0; s.spin = spin; s.lab = 0
    def A(s, x): s.L.append("    " + x)
    def label(s, n): s.L.append(n + ":")
    def newlab(s, p="L"):
        s.lab += 1; return f"{p}_{s.lab}"
    def stamp(s, i):
        if s.stamps: s.A(f"s_memrealtime s[{64+2*i}:{65+2*i}]")
    def vm(s, name, text):
        s.A(text); s.ops.append(name)
    def after(s, name):
        return len(s.ops) - 1 - s.ops.index(name)
    def wait_for(s, name, extra=0):
        n = s.after(name) + extra
        assert n <= 63
        s.A(f"s_waitcnt vmcnt({n})")
    def gate(s):
        s.A(f"s_waitcnt vmcnt({s.W-1})")
    def kreg(s, T, t): return 128 + (T*4 + t)*4
    def vreg(s, i):
        return 16 + 4*i if i < 16 else 128 + 4*(i-16)
    def kload(s, idx, gate=True):
        T, t = divmod(idx, 4)
        if gate: s.gate()
        if t == 0:
            s.A(f"s_add_u32 s15, s14, {T*32768}")
        r = s.kreg(T, t)
        s.vm(f"K{idx}", f"buffer_load_dwordx4 {vr(r,4)}, v4, {srd(K_)}, s15 offen offset:{t*64} {s.nt}")
    def vload(s, idx, gate=True):
        T, t = divmod(idx, 4)
        if gate: s.gate()
        if t == 0:
            s.A(f"s_add_u32 s15, s14, {T*32768}")
        r = s.vreg(idx)
        s.vm(f"V{idx}", f"buffer_load_dwordx4 {vr(r,4)}, v5, {srd(V_)}, s15 offen offset:{t*1024} {s.nt}")

    def gen(s):
        A = s.A
        s.L.append(HEADER.rstrip())
        s.L.append(f"; @launch grid=(256,1,1) block=(512,1,1) lds={LDS_TOTAL}")
        s.L.append('.amdgcn_target "amdgcn-amd-amdhsa--gfx950"')
        s.L += [".text", f".globl {KN}", ".p2align 8", f".type {KN},@function", f"{KN}:"]
        s.stamp(0)
        A("s_bfe_u32 s4, s2, 0x10002")
        A("s_mul_i32 s5, s4, 40")
        A("s_add_u32 s6, s0, s5"); A("s_addc_u32 s7, s1, 0")
        A("s_cmp_ge_u32 s2, 256"); A("s_cbranch_scc1 L_end")
        A(f"s_load_dwordx2 s[{WS_}:{WS_+1}], s[0:1], 96")
        A(f"s_load_dwordx2 s[{X_}:{X_+1}], s[6:7], 0")
        A(f"s_load_dwordx2 s[{WQ_}:{WQ_+1}], s[6:7], 24")
        A(f"s_load_dwordx2 s[{K_}:{K_+1}], s[6:7], 8")
        A(f"s_load_dwordx2 s[{V_}:{V_+1}], s[6:7], 16")
        A(f"s_load_dwordx2 s[{WO_}:{WO_+1}], s[6:7], 32")
        A(f"s_load_dwordx2 s[{OUT_}:{OUT_+1}], s[0:1], 80")
        A(f"s_load_dwordx2 s[{DBG_}:{DBG_+1}], s[0:1], 88")
        A("v_lshrrev_b32 v8, 6, v0")
        A("v_and_b32 v1, 63, v0")
        A("v_readfirstlane_b32 s13, v8")
        A("v_and_b32 v2, 15, v0")
        A("v_bfe_u32 v3, v0, 4, 2")
        A("s_and_b32 s5, s2, 3"); A("s_lshl_b32 s5, s5, 1"); A("s_bfe_u32 s22, s2, 0x10003"); A("s_or_b32 s5, s5, s22")
        A("s_lshl_b32 s3, s4, 3"); A("s_or_b32 s3, s3, s5")
        A("s_lshr_b32 s8, s2, 4")
        A("s_and_b32 s9, s8, 7")
        A("s_lshr_b32 s10, s8, 3")
        A("s_lshr_b32 s11, s8, 2")
        A("s_and_b32 s12, s8, 3")
        for r, n in ((K_, 0x8000000), (V_, 0x8000000), (WQ_, 0x400000), (WO_, 0x400000), (X_, 8192), (WS_, 553664512), (OUT_, 16384), (DBG_, 256)):
            A(f"s_mov_b32 s{r+2}, {hex(n)}"); A(f"s_mov_b32 s{r+3}, 0x20000")
        A("s_lshl_b32 s21, s3, 17"); A(f"s_add_u32 s21, s21, {hex(BLK)}")
        A("s_lshl_b32 s20, s8, 13"); A("s_add_u32 s20, s20, s21")
        A("v_lshlrev_b32 v5, 4, v1")
        A("v_and_b32 v6, 7, v0"); A("v_lshlrev_b32 v6, 10, v6"); A("v_lshl_or_b32 v6, v3, 4, v6")
        A("v_lshlrev_b32 v7, 16, v3"); A("v_lshl_or_b32 v7, v2, 2, v7")
        A("v_and_b32 v4, 3, v0"); A("v_lshlrev_b32 v4, 10, v4")
        A("v_bfe_u32 v8, v0, 2, 2"); A("v_lshl_or_b32 v4, v8, 8, v4")
        A("v_lshl_or_b32 v4, v3, 4, v4")
        A("v_mov_b32 v8, -1"); A("v_mov_b32 v9, -1"); A("v_mov_b32 v10, -1"); A("v_mov_b32 v11, -1")
        A("s_lshl_b32 s22, s13, 10"); A("s_add_u32 s22, s22, s20")
        A("s_lshl_b32 s23, s13, 7")
        A("s_lshl_b32 s15, s13, 19"); A("s_lshl_b32 s24, s5, 10"); A("s_add_u32 s15, s15, s24")
        A("s_lshl_b32 s24, s8, 6"); A("s_add_u32 s15, s15, s24")
        A("s_lshl_b32 s14, s9, 3"); A("s_add_u32 s14, s14, s5"); A("s_lshl_b32 s14, s14, 21")
        A("s_lshl_b32 s24, s10, 18"); A("s_add_u32 s14, s14, s24")
        A("s_lshl_b32 s24, s13, 12"); A("s_add_u32 s14, s14, s24"); A(f"s_add_u32 s14, s14, {6144*256}")
        A("s_mov_b32 s16, 0x05040100"); A("s_mov_b32 s17, 0x07060302")
        A(f"s_mov_b32 s18, {hex(f32bits(128**-0.5 * 1.4426950408889634))}")
        A("s_waitcnt lgkmcnt(0)")
        s.stamp(1)
        for tau in range(2):
            s.vm(f"X{tau}", f"buffer_load_dwordx4 {vr(32+4*tau,4)}, v6, {srd(X_)}, s23 offen offset:{tau*64}")
        for tau in range(2):
            for i in range(8):
                s.vm(f"WQ{tau*8+i}", f"buffer_load_dword v{16+tau*8+i}, v7, {srd(WQ_)}, s15 offen {s.wnt}")
                if not (tau == 1 and i == 7):
                    A(f"s_add_u32 s15, s15, {8192 if i < 7 else 8192*25}")
        l = s.newlab()
        A("s_cmp_ge_u32 s13, 6"); A(f"s_cbranch_scc1 {l}")
        A(f"buffer_store_dwordx4 v[8:11], v5, {srd(WS_)}, s22 offen sc1")
        s.label(l)
        k = 0
        for k in range(s.N1): s.kload(k, gate=False)
        k = s.N1
        s.wait_for("WQ15")
        s.stamp(2)
        for tau in range(2):
            for d in range(2):
                for kk in range(4):
                    A(f"v_perm_b32 v{40+tau*8+d*4+kk}, v{16+tau*8+2*kk+1}, v{16+tau*8+2*kk}, s{16+d}")
        A("s_nop 1")
        for tau in range(2):
            for d in range(2):
                c = "0" if tau == 0 else vr(56+4*d, 4)
                A(f"v_mfma_f32_16x16x32_bf16 {vr(56+4*d,4)}, {vr(32+4*tau,4)}, {vr(40+tau*8+d*4,4)}, {c}")
        A("s_lshl_b32 s22, s13, 11")
        A("v_add_u32 v8, s22, v5")
        A("s_nop 7")
        A(f"ds_write_b128 v8, v[56:59] offset:{LDS_QP}")
        A(f"ds_write_b128 v8, v[60:63] offset:{LDS_QP+1024}")
        A("s_waitcnt lgkmcnt(0)")
        A("s_barrier")
        l = s.newlab()
        A("s_cmp_lg_u32 s13, 0"); A(f"s_cbranch_scc1 {l}")
        A("v_lshrrev_b32 v8, 5, v1"); A("v_lshlrev_b32 v8, 13, v8")
        A("v_and_b32 v9, 31, v1"); A("v_lshl_or_b32 v8, v9, 4, v8")
        for ww in range(4):
            for d in range(2):
                A(f"ds_read_b128 {vr(16+(ww*2+d)*4,4)}, v8 offset:{LDS_QP+(ww*2+d)*1024}")
        A("v_and_b32 v9, 1, v3"); A("v_lshlrev_b32 v9, 15, v9")
        A("v_lshrrev_b32 v10, 1, v3"); A("v_lshl_or_b32 v9, v10, 14, v9"); A("v_lshl_or_b32 v9, v2, 2, v9")
        A("s_lshl_b32 s22, s4, 16"); A("s_lshl_b32 s23, s5, 10"); A("s_add_u32 s22, s22, s23")
        A("s_lshl_b32 s23, s8, 6"); A("s_add_u32 s22, s22, s23"); A("s_add_u32 s23, s22, 8192")
        A("s_waitcnt lgkmcnt(0)")
        for d in range(2):
            for r in range(4):
                a = 16 + d*4 + r
                A(f"v_add_f32 v{a}, v{a}, v{a+8}")
                A(f"v_add_f32 v{a+16}, v{a+16}, v{a+24}")
        for d in range(2):
            for r in range(4):
                a = 16 + d*4 + r
                A(f"v_add_f32 v{a}, v{a}, v{a+16}")
        A("s_nop 1")
        for d in range(2):
            for r in range(2):
                a = 16 + d*4 + r
                A(f"v_permlane32_swap_b32 v{a}, v{a+2}")
        A("s_nop 1")
        for d in range(2):
            for r in range(2):
                a = 16 + d*4 + r
                A(f"v_add_f32 v{a}, v{a}, v{a+2}")
        A("v_cvt_pk_bf16_f32 v10, v16, v20")
        A("v_cvt_pk_bf16_f32 v11, v17, v21")
        A(f"buffer_store_dword v10, v9, {srd(WS_)}, s22 offen sc1")
        A(f"buffer_store_dword v11, v9, {srd(WS_)}, s23 offen sc1")
        s.label(l)
        mark_q = len(s.ops)
        s.stamp(3)
        nslots = 32 + s.W
        flag_mark = q_mark = None
        for slot in range(k, nslots):
            if slot == s.ASLOT:
                l = s.newlab()
                A("s_cmp_lg_u32 s13, 0"); A(f"s_cbranch_scc1 {l}")
                A(f"s_waitcnt vmcnt({len(s.ops)-mark_q})")
                A("s_mov_b64 exec, 1")
                A("v_mov_b32 v8, 1"); A("s_lshl_b32 s22, s4, 7")
                A(f"buffer_atomic_add v8, off, {srd(DBG_)}, s22 sc1")
                A("s_mov_b64 exec, -1")
                s.stamp(4)
                s.label(l)
            if slot == s.FSLOT:
                l = s.newlab()
                A("s_cmp_lg_u32 s13, 1"); A(f"s_cbranch_scc1 {l}")
                A("s_lshl_b32 s22, s4, 7")
                A(f"buffer_load_dword v8, off, {srd(DBG_)}, s22 sc1")
                s.label(l)
                flag_mark = len(s.ops)
            if slot == s.FSLOT + s.W:
                l = s.newlab(); lr = s.newlab(); lok = s.newlab()
                A("s_cmp_lg_u32 s13, 1"); A(f"s_cbranch_scc1 {l}")
                A(f"s_waitcnt vmcnt({len(s.ops)-flag_mark})")
                A(f"s_mov_b32 s19, {s.spin}")
                s.label(lr)
                A("v_readfirstlane_b32 s23, v8")
                A("s_cmp_ge_u32 s23, 128"); A(f"s_cbranch_scc1 {lok}")
                A("s_sub_u32 s19, s19, 1"); A("s_cmp_eq_u32 s19, 0"); A(f"s_cbranch_scc1 {lok}")
                A("s_sleep 4")
                A(f"buffer_load_dword v8, off, {srd(DBG_)}, s22 sc1")
                A("s_waitcnt vmcnt(0)")
                A(f"s_branch {lr}")
                s.label(lok)
                s.stamp(4)
                A("s_lshl_b32 s22, s4, 16"); A("s_lshl_b32 s23, s9, 13"); A("s_add_u32 s22, s22, s23")
                A("s_lshl_b32 s23, s5, 10"); A("s_add_u32 s22, s22, s23")
                A(f"buffer_load_dwordx4 v[8:11], v5, {srd(WS_)}, s22 offen sc1")
                s.label(l)
                q_mark = len(s.ops)
            if slot < 32: s.kload(slot)
            else: s.vload(slot - 32)
        vnext = s.W
        l = s.newlab()
        A("s_cmp_lg_u32 s13, 1"); A(f"s_cbranch_scc1 {l}")
        A(f"s_waitcnt vmcnt({len(s.ops)-q_mark})")
        A(f"ds_write_b128 v5, v[8:11] offset:{LDS_QS}")
        A("s_waitcnt lgkmcnt(0)")
        s.label(l)
        A("v_lshrrev_b32 v8, 2, v2"); A("v_lshlrev_b32 v8, 8, v8"); A("v_lshl_or_b32 v8, v3, 4, v8")
        A("s_barrier")
        s.stamp(5)
        for t in range(4):
            A(f"ds_read_b128 {vr(80+4*t,4)}, v8 offset:{LDS_QS+t*64}")
        s.vload(vnext, gate=False); vnext += 1
        s.wait_for("K31")
        A("s_waitcnt lgkmcnt(0)")
        for T in range(8):
            for t in range(4):
                c = "0" if t == 0 else vr(96+4*T, 4)
                A(f"v_mfma_f32_16x16x32_bf16 {vr(96+4*T,4)}, {vr(s.kreg(T,t),4)}, {vr(80+4*t,4)}, {c}")
        s.vload(vnext, gate=False); vnext += 1
        A("s_nop 6")
        A("v_max3_f32 v8, v96, v97, v98"); A("v_max3_f32 v9, v99, v100, v101")
        rest = list(range(102, 128))
        i = 0
        while i + 1 < len(rest):
            dst = 8 + (i//2) % 2
            A(f"v_max3_f32 v{dst}, v{dst}, v{rest[i]}, v{rest[i+1]}"); i += 2
        A("v_max_f32 v8, v8, v9")
        A("v_mov_b32 v9, v8"); A("s_nop 1"); A("v_permlane32_swap_b32 v8, v9"); A("s_nop 1"); A("v_max_f32 v8, v8, v9")
        A("v_mov_b32 v9, v8"); A("s_nop 1"); A("v_permlane16_swap_b32 v8, v9"); A("s_nop 1"); A("v_max_f32 v8, v8, v9")
        A("v_mul_f32 v8, s18, v8")
        for r in range(96, 128):
            A(f"v_fma_f32 v{r}, v{r}, s18, -v8")
        s.vload(vnext, gate=False); vnext += 1
        for r in range(96, 128):
            A(f"v_exp_f32 v{r}, v{r}")
        s.vload(vnext, gate=False); vnext += 1
        A("v_add_f32 v9, v96, v97"); A("v_add_f32 v10, v98, v99"); A("v_add_f32 v11, v100, v101"); A("v_add_f32 v12, v102, v103")
        for r in range(104, 128):
            d = 9 + (r % 4)
            A(f"v_add_f32 v{d}, v{d}, v{r}")
        A("v_add_f32 v9, v9, v10"); A("v_add_f32 v11, v11, v12"); A("v_add_f32 v9, v9, v11")
        A("v_mov_b32 v10, v9"); A("s_nop 1"); A("v_permlane32_swap_b32 v9, v10"); A("s_nop 1"); A("v_add_f32 v9, v9, v10")
        A("v_mov_b32 v10, v9"); A("s_nop 1"); A("v_permlane16_swap_b32 v9, v10"); A("s_nop 1"); A("v_add_f32 v9, v9, v10")
        A("v_lshrrev_b32 v10, 2, v2"); A("v_lshlrev_b32 v10, 6, v10"); A("s_lshl_b32 s22, s13, 3"); A("v_add_u32 v10, s22, v10")
        A(f"ds_write_b64 v10, v[8:9] offset:{LDS_STAT}")
        for q in range(16):
            A(f"v_cvt_pk_bf16_f32 v{96+q}, v{96+2*q}, v{97+2*q}")
        s.stamp(6)
        ftmp = [80, 84, 88, 92, 112, 116, 120, 124]
        def pv_group(gam, waitfn):
            waitfn()
            for d in range(8):
                for kk in range(4):
                    a = s.vreg(gam*8 + 2*kk) + (d >> 1); b = s.vreg(gam*8 + 2*kk + 1) + (d >> 1)
                    A(f"v_perm_b32 v{ftmp[d]+kk}, v{b}, v{a}, s{16+(d&1)}")
                if d >= 1:
                    dd = d - 1
                    c = "0" if gam == 0 else vr(224+4*dd, 4)
                    A(f"v_mfma_f32_16x16x32_bf16 {vr(224+4*dd,4)}, {vr(96+4*gam,4)}, {vr(ftmp[dd],4)}, {c}")
            A("s_nop 1")
            c = "0" if gam == 0 else vr(224+28, 4)
            A(f"v_mfma_f32_16x16x32_bf16 {vr(224+28,4)}, {vr(96+4*gam,4)}, {vr(ftmp[7],4)}, {c}")
        for gam in range(3):
            last = gam*8 + 7
            while vnext <= min(31, last + s.W):
                s.vload(vnext); vnext += 1
            pv_group(gam, lambda: s.wait_for(f"V{last}"))
        A("v_lshlrev_b32 v10, 6, v3")
        A("s_lshl_b32 s22, s13, 3"); A("v_add_u32 v11, s22, v10")
        A("s_waitcnt lgkmcnt(0)")
        A("s_barrier")
        s.stamp(7)
        for q in range(4):
            A(f"ds_read_b128 {vr(16+4*q,4)}, v10 offset:{LDS_STAT+16*q}")
        A(f"ds_read_b32 v12, v11 offset:{LDS_STAT}")
        if vnext <= 31:
            s.vload(vnext); vnext += 1
        A("s_waitcnt lgkmcnt(0)")
        A("v_max3_f32 v8, v16, v18, v20"); A("v_max3_f32 v9, v22, v24, v26"); A("v_max3_f32 v8, v8, v28, v30"); A("v_max_f32 v8, v8, v9")
        for w in range(8): A(f"v_sub_f32 v{16+2*w}, v{16+2*w}, v8")
        A("v_sub_f32 v12, v12, v8")
        for w in range(8): A(f"v_exp_f32 v{16+2*w}, v{16+2*w}")
        A("v_exp_f32 v12, v12")
        A("v_mul_f32 v9, v16, v17")
        for w in range(1, 8): A(f"v_fma_f32 v9, v{16+2*w}, v{17+2*w}, v9")
        A("v_rcp_f32 v13, v9"); A("v_log_f32 v14, v9")
        A("s_nop 0")
        A("v_mul_f32 v12, v12, v13")
        A("v_add_f32 v14, v14, v8")
        l = s.newlab()
        A("s_cmp_lg_u32 s13, 5"); A(f"s_cbranch_scc1 {l}")
        A("v_lshlrev_b32 v10, 15, v3")
        A("s_lshl_b32 s22, s8, 2"); A("s_add_u32 s22, s22, s21"); A("s_add_u32 s22, s22, 5120")
        A("s_mov_b32 exec_lo, 0x00010001"); A("s_mov_b32 exec_hi, 0x00010001")
        A(f"buffer_store_dword v14, v10, {srd(WS_)}, s22 offen sc1")
        A("s_mov_b64 exec, -1")
        s.label(l)
        while vnext <= 31:
            s.vload(vnext); vnext += 1
        l = s.newlab()
        A("s_cmp_ge_u32 s13, 4"); A(f"s_cbranch_scc1 {l}")
        A("v_lshlrev_b32 v10, 13, v3"); A("v_lshl_or_b32 v10, v2, 2, v10")
        A("s_lshl_b32 s22, s5, 2"); A("s_add_u32 s22, s22, s11"); A("s_lshl_b32 s22, s22, 17")
        A("s_lshl_b32 s23, s12, 8"); A("s_add_u32 s22, s22, s23"); A("s_lshl_b32 s23, s13, 6"); A("s_add_u32 s22, s22, s23")
        for ks in range(4):
            for i in range(8):
                if i % 4 == 0 and (ks, i) != (0, 0):
                    A(f"s_add_u32 s22, s22, {4096 if i == 4 else 32768-4096}")
                A(f"buffer_load_dword v{192+ks*8+i}, v10, {srd(WO_)}, s22 offen offset:{(i&3)*1024} {s.wnt}")
        A("s_waitcnt vmcnt(32)")
        l2 = s.newlab()
        A(f"s_branch {l2}")
        s.label(l)
        A("s_waitcnt vmcnt(0)")
        s.label(l2)
        s.stamp(8)
        pv_group(3, lambda: None)
        A("s_lshl_b32 s22, s13, 11")
        A("v_lshlrev_b32 v10, 5, v1"); A("v_add_u32 v10, s22, v10")
        A("s_nop 5")
        for d in range(8):
            A(f"v_mul_f32 v{16+d}, v12, v{224+4*d}")
        A(f"ds_write_b128 v10, v[16:19] offset:{LDS_QP}")
        A(f"ds_write_b128 v10, v[20:23] offset:{LDS_QP+16}")
        A("s_waitcnt lgkmcnt(0)")
        A("s_barrier")
        s.stamp(9)
        A("s_cmp_lt_u32 s13, 4"); A("s_cbranch_scc1 L_proj")
        A("s_sub_u32 s22, s13, 4"); A("s_lshl_b32 s23, s22, 9")
        A("v_lshlrev_b32 v10, 3, v1"); A("v_add_u32 v10, s23, v10")
        for w in range(8):
            A(f"ds_read_b64 {vr(16+2*w,2)}, v10 offset:{LDS_QP+w*2048}")
        A("s_lshl_b32 s22, s22, 8"); A("s_add_u32 s22, s22, s20")
        A("v_lshlrev_b32 v11, 2, v1")
        A("s_waitcnt lgkmcnt(4)")
        A("v_add_f32 v16, v16, v18"); A("v_add_f32 v17, v17, v19"); A("v_add_f32 v20, v20, v22"); A("v_add_f32 v21, v21, v23")
        A("v_add_f32 v16, v16, v20"); A("v_add_f32 v17, v17, v21")
        A("s_waitcnt lgkmcnt(0)")
        A("v_add_f32 v24, v24, v26"); A("v_add_f32 v25, v25, v27"); A("v_add_f32 v28, v28, v30"); A("v_add_f32 v29, v29, v31")
        A("v_add_f32 v24, v24, v28"); A("v_add_f32 v25, v25, v29")
        A("v_add_f32 v16, v16, v24"); A("v_add_f32 v17, v17, v25")
        A("v_cvt_pk_bf16_f32 v16, v16, v17")
        A(f"buffer_store_dword v16, v11, {srd(WS_)}, s22 offen sc1")
        s.stamp(10)
        A("s_add_u32 s22, s20, 1024")
        A(f"s_mov_b32 s19, {s.spin}")
        A("v_and_b32 v10, 7, v1"); A("v_lshlrev_b32 v10, 3, v10"); A("v_lshl_or_b32 v10, v3, 1, v10")
        A("s_lshl_b32 s23, s5, 11"); A("s_lshl_b32 s24, s4, 10"); A("s_add_u32 s23, s23, s24")
        A("s_lshl_b32 s24, s12, 8"); A("s_add_u32 s23, s23, s24"); A("s_lshl_b32 s24, s11, 6"); A("s_add_u32 s23, s23, s24")
        A("s_barrier")
        A("s_cmp_lg_u32 s13, 4"); A("s_cbranch_scc1 L_fin")
        s.stamp(11)
        s.label("L_poll2")
        for q in range(4):
            A(f"buffer_load_dwordx4 {vr(16+4*q,4)}, v5, {srd(WS_)}, s22 offen offset:{q*1024} sc1")
        A("s_sub_u32 s19, s19, 1")
        A("s_waitcnt vmcnt(0)")
        A("v_max3_u32 v8, v16, v17, v18"); A("v_max3_u32 v9, v19, v20, v21")
        A("v_max3_u32 v8, v8, v22, v23"); A("v_max3_u32 v9, v9, v24, v25")
        A("v_max3_u32 v8, v8, v26, v27"); A("v_max3_u32 v9, v9, v28, v29")
        A("v_max3_u32 v8, v8, v30, v31"); A("v_max_u32 v8, v8, v9")
        A("v_cmp_eq_u32 vcc, -1, v8")
        A("s_cmp_eq_u32 s19, 0"); A("s_cbranch_scc1 L_got2")
        A("s_cbranch_vccnz L_poll2")
        s.label("L_got2")
        s.stamp(12)
        for c in range(4):
            A(f"v_add_f32 v{16+c}, v{16+c}, v{20+c}"); A(f"v_add_f32 v{24+c}, v{24+c}, v{28+c}")
        for c in range(4):
            A(f"v_add_f32 v{16+c}, v{16+c}, v{24+c}")
        A("s_nop 1")
        A("v_permlane32_swap_b32 v16, v18"); A("v_permlane32_swap_b32 v17, v19")
        A("s_nop 1")
        A("v_add_f32 v16, v16, v18"); A("v_add_f32 v17, v17, v19")
        A("s_nop 1")
        A("v_permlane16_swap_b32 v16, v17")
        A("s_nop 1")
        A("v_add_f32 v16, v16, v17")
        A("s_nop 1")
        A("v_add_f32_dpp v16, v16, v16 row_ror:8 row_mask:0xf bank_mask:0xf")
        A("v_cvt_pk_bf16_f32 v16, v16, v16")
        A(f"buffer_store_short v16, v10, {srd(OUT_)}, s23 offen")
        s.stamp(13)
        A("s_branch L_fin")
        s.label("L_proj")
        A("v_lshlrev_b32 v10, 13, v2"); A("v_lshl_or_b32 v10, v3, 4, v10")
        A("s_lshl_b32 s22, s11, 8"); A("s_add_u32 s22, s22, s21"); A("s_lshl_b32 s23, s13, 6"); A("s_add_u32 s22, s22, s23")
        A("v_lshlrev_b32 v11, 4, v3"); A("v_xor_b32 v13, 32, v11")
        A("s_lshl_b32 s23, s11, 15"); A("s_add_u32 s23, s23, s21"); A("s_add_u32 s23, s23, 5120")
        A(f"buffer_load_dwordx4 v[68:71], v11, {srd(WS_)}, s23 offen sc1")
        A(f"buffer_load_dwordx4 v[72:75], v13, {srd(WS_)}, s23 offen sc1")
        A(f"buffer_load_dwordx4 v[48:51], v10, {srd(WS_)}, s22 offen sc1")
        A(f"s_mov_b32 s19, {s.spin}")
        A("s_waitcnt vmcnt(3)")
        for ks in range(4):
            for d in range(2):
                for kk in range(4):
                    A(f"v_perm_b32 v{16+ks*8+d*4+kk}, v{192+ks*8+2*kk+1}, v{192+ks*8+2*kk}, s{16+d}")
        s.stamp(10)
        A("v_and_b32 v14, 1, v3"); A("v_lshlrev_b32 v14, 19, v14")
        A("v_lshrrev_b32 v15, 1, v3"); A("v_lshl_or_b32 v14, v15, 18, v14")
        A("v_lshl_or_b32 v14, v2, 3, v14")
        A("s_lshl_b32 s24, s4, 7"); A("s_lshl_b32 s25, s13, 2"); A("s_add_u32 s24, s24, s25"); A("s_add_u32 s24, s24, s12")
        A("s_lshl_b32 s24, s24, 13"); A(f"s_add_u32 s24, s24, {BLK+1024}")
        A("s_lshl_b32 s25, s5, 2"); A("s_add_u32 s25, s25, s11"); A("s_lshl_b32 s25, s25, 7"); A("s_add_u32 s24, s24, s25")
        A("s_add_u32 s25, s24, 0x20000")
        A("s_lshl_b32 s26, s13, 10"); A("v_add_u32 v15, s26, v5")
        s.label("L_poll1")
        A("s_waitcnt vmcnt(0)")
        A("v_max3_u32 v8, v48, v49, v50"); A("v_max3_u32 v9, v68, v69, v70")
        A("v_max3_u32 v8, v8, v51, v71"); A("v_max3_u32 v9, v9, v72, v73"); A("v_max3_u32 v8, v8, v74, v75"); A("v_max_u32 v8, v8, v9")
        A("v_cmp_eq_u32 vcc, -1, v8")
        A("s_cbranch_vccz L_got1")
        A("s_sub_u32 s19, s19, 1"); A("s_cmp_eq_u32 s19, 0"); A("s_cbranch_scc1 L_got1")
        A(f"buffer_load_dwordx4 v[68:71], v11, {srd(WS_)}, s23 offen sc1")
        A(f"buffer_load_dwordx4 v[72:75], v13, {srd(WS_)}, s23 offen sc1")
        A(f"buffer_load_dwordx4 v[48:51], v10, {srd(WS_)}, s22 offen sc1")
        A("s_branch L_poll1")
        s.label("L_got1")
        A(f"ds_write_b128 v15, v[48:51] offset:{LDS_AX}")
        for r in range(4): A(f"v_sub_f32 v{72+r}, v{72+r}, v{68+r}")
        for r in range(4): A(f"v_exp_f32 v{72+r}, v{72+r}")
        A("s_waitcnt lgkmcnt(0)")
        A("s_barrier")
        s.stamp(11)
        for ks in range(4):
            A(f"ds_read_b128 {vr(52+4*ks,4)}, v5 offset:{LDS_AX+ks*1024}")
        for r in range(4): A(f"v_add_f32 v{72+r}, 1.0, v{72+r}")
        for r in range(4): A(f"v_rcp_f32 v{72+r}, v{72+r}")
        for ks in range(4):
            A(f"s_waitcnt lgkmcnt({3-ks})")
            for d in range(2):
                c = "0" if ks == 0 else vr(76+4*d, 4)
                A(f"v_mfma_f32_16x16x32_bf16 {vr(76+4*d,4)}, {vr(52+4*ks,4)}, {vr(16+ks*8+d*4,4)}, {c}")
        A("s_nop 6")
        for d in range(2):
            for r in range(4):
                A(f"v_mul_f32 v{76+4*d+r}, v{72+r}, v{76+4*d+r}")
        A("s_nop 1")
        for d in range(2):
            for r in range(2):
                A(f"v_permlane32_swap_b32 v{76+4*d+r}, v{76+4*d+r+2}")
        A("s_nop 1")
        for r in range(2):
            for d in range(2):
                A(f"v_add_f32 v{84+2*r+d}, v{76+4*d+r}, v{76+4*d+r+2}")
        A(f"buffer_store_dwordx2 v[84:85], v14, {srd(WS_)}, s24 offen sc1")
        A(f"buffer_store_dwordx2 v[86:87], v14, {srd(WS_)}, s25 offen sc1")
        s.stamp(12)
        s.label("L_fin")
        if s.stamps:
            A("s_waitcnt vmcnt(0)")
            s.stamp(14)
            A("s_waitcnt lgkmcnt(0)")
            A("s_lshl_b32 s22, s2, 4"); A("s_add_u32 s22, s22, s13"); A("s_lshl_b32 s22, s22, 7"); A("s_add_u32 s22, s22, 0x10000000")
            A("s_mov_b64 exec, 1")
            for j in range(15):
                A(f"v_mov_b32 v6, s{64+2*j}"); A(f"v_mov_b32 v7, s{65+2*j}")
                A(f"buffer_store_dwordx2 v[6:7], off, {srd(WS_)}, s22 offset:{j*8}")
                A("s_nop 1")
        s.label("L_end")
        A("s_endpgm")
        s.L += ['.section .rodata,"a"', ".p2align 6", f".amdhsa_kernel {KN}",
                "  .amdhsa_next_free_vgpr 256", "  .amdhsa_next_free_sgpr 102", "  .amdhsa_accum_offset 256",
                "  .amdhsa_group_segment_fixed_size 0", "  .amdhsa_kernarg_size 104", "  .amdhsa_user_sgpr_count 2",
                "  .amdhsa_user_sgpr_kernarg_segment_ptr 1", "  .amdhsa_system_sgpr_workgroup_id_x 1", ".end_amdhsa_kernel"]
        txt = "\n".join(s.L) + "\n"
        if s.stamps:
            init = "\n".join(f"    s_mov_b64 s[{64+2*j}:{65+2*j}], 0" for j in range(1, 15))
            txt = txt.replace(f"{KN}:\n", f"{KN}:\n{init}\n", 1)
        return txt

if __name__ == "__main__":
    from build import build
    open("k1.s", "w").write(G().gen()); build("k1.s")
    open("k1s.s", "w").write(G(stamps=True).gen()); build("k1s.s")
    print("ok")
```

```python
import sys, struct
KN = "concat_heads__sliding_block_cached__sliding_block_cached__decode_kernel"
HEADER = open("concat_heads__sliding_block_cached__sliding_block_cached__decode.s.ref").read().split("; Override launch")[0]

def f32bits(x): return struct.unpack("<I", struct.pack("<f", x))[0]

BLK = 0x20000
LDS_QP = 0; LDS_QS = 16384; LDS_STAT = 17408; LDS_AX = 18432; LDS_TOTAL = 22528
K_, V_, WQ_, WO_, X_, WS_, OUT_, DBG_ = 28, 32, 36, 40, 44, 48, 52, 56
def srd(r): return f"s[{r}:{r+3}]"
def vr(a, n): return f"v[{a}:{a+n-1}]" if n > 1 else f"v{a}"

class G:
    def __init__(s, W=4, N1=6, stamps=False, dbgst=False, codepf=False, tlbpf=False, FSLOT=22, ASLOT=10, nt="nt", wnt="nt", spin=20000):
        s.L = []; s.W = W; s.N1 = N1; s.stamps = stamps; s.FSLOT = FSLOT; s.ASLOT = ASLOT; s.nt = nt; s.wnt = wnt
        s.ops = []
        s.nst = 0; s.spin = spin; s.lab = 0; s.dbgst = dbgst; s.codepf = codepf; s.tlbpf = tlbpf
        if dbgst: s.stamps = True
    def A(s, x): s.L.append("    " + x)
    def label(s, n): s.L.append(n + ":")
    def newlab(s, p="L"):
        s.lab += 1; return f"{p}_{s.lab}"
    def stamp(s, i):
        if s.stamps: s.A(f"s_memrealtime s[{64+2*i}:{65+2*i}]")
    def vm(s, name, text):
        s.A(text); s.ops.append(name)
    def after(s, name):
        return len(s.ops) - 1 - s.ops.index(name)
    def wait_for(s, name, extra=0):
        n = s.after(name) + extra
        assert n <= 63
        s.A(f"s_waitcnt vmcnt({n})")
    def gate(s):
        s.A(f"s_waitcnt vmcnt({s.W-1})")
    def kreg(s, T, t): return 128 + (T*4 + t)*4
    def vreg(s, i):
        return 16 + 4*i if i < 16 else 128 + 4*(i-16)
    def kload(s, idx, gate=True):
        T, t = divmod(idx, 4)
        if gate: s.gate()
        if t == 0:
            s.A(f"s_add_u32 s15, s14, {T*32768}")
        r = s.kreg(T, t)
        s.vm(f"K{idx}", f"buffer_load_dwordx4 {vr(r,4)}, v4, {srd(K_)}, s15 offen offset:{t*64} {s.nt}")
    def vload(s, idx, gate=True):
        T, t = divmod(idx, 4)
        if gate: s.gate()
        if t == 0:
            s.A(f"s_add_u32 s15, s14, {T*32768}")
        r = s.vreg(idx)
        s.vm(f"V{idx}", f"buffer_load_dwordx4 {vr(r,4)}, v5, {srd(V_)}, s15 offen offset:{t*1024} {s.nt}")

    def gen(s):
        A = s.A
        s.L.append(HEADER.rstrip())
        s.L.append(f"; @launch grid=(256,1,1) block=(512,1,1) lds={LDS_TOTAL}")
        s.L.append('.amdgcn_target "amdgcn-amd-amdhsa--gfx950"')
        s.L += [".text", f".globl {KN}", ".p2align 8", f".type {KN},@function", f"{KN}:"]
        s.stamp(0)
        A("s_bfe_u32 s4, s2, 0x10002")
        A("s_mul_i32 s5, s4, 40")
        A("s_add_u32 s6, s0, s5"); A("s_addc_u32 s7, s1, 0")
        A("s_cmp_ge_u32 s2, 256"); A("s_cbranch_scc1 L_end")
        A(f"s_load_dwordx2 s[{WS_}:{WS_+1}], s[0:1], 96")
        A(f"s_load_dwordx2 s[{X_}:{X_+1}], s[6:7], 0")
        A(f"s_load_dwordx2 s[{WQ_}:{WQ_+1}], s[6:7], 24")
        A(f"s_load_dwordx2 s[{K_}:{K_+1}], s[6:7], 8")
        A(f"s_load_dwordx2 s[{V_}:{V_+1}], s[6:7], 16")
        A(f"s_load_dwordx2 s[{WO_}:{WO_+1}], s[6:7], 32")
        A(f"s_load_dwordx2 s[{OUT_}:{OUT_+1}], s[0:1], 80")
        A(f"s_load_dwordx2 s[{DBG_}:{DBG_+1}], s[0:1], 88")
        if s.codepf:
            A("s_getpc_b64 s[26:27]")
            A("v_lshlrev_b32 v12, 4, v0")
            A("global_load_dword v13, v12, s[26:27]")
        A("v_lshrrev_b32 v8, 6, v0")
        A("v_and_b32 v1, 63, v0")
        A("v_readfirstlane_b32 s13, v8")
        A("v_and_b32 v2, 15, v0")
        A("v_bfe_u32 v3, v0, 4, 2")
        A("s_and_b32 s5, s2, 3"); A("s_lshl_b32 s5, s5, 1"); A("s_bfe_u32 s22, s2, 0x10003"); A("s_or_b32 s5, s5, s22")
        A("s_lshl_b32 s3, s4, 3"); A("s_or_b32 s3, s3, s5")
        A("s_lshr_b32 s8, s2, 4")
        A("s_and_b32 s9, s8, 7")
        A("s_lshr_b32 s10, s8, 3")
        A("s_lshr_b32 s11, s8, 2")
        A("s_and_b32 s12, s8, 3")
        for r, n in ((K_, 0x8000000), (V_, 0x8000000), (WQ_, 0x400000), (WO_, 0x400000), (X_, 8192), (WS_, 553664512), (OUT_, 16384), (DBG_, 256)):
            A(f"s_mov_b32 s{r+2}, {hex(n)}"); A(f"s_mov_b32 s{r+3}, 0x20000")
        A("s_lshl_b32 s21, s3, 17"); A(f"s_add_u32 s21, s21, {hex(BLK)}")
        A("s_lshl_b32 s20, s8, 13"); A("s_add_u32 s20, s20, s21")
        A("v_lshlrev_b32 v5, 4, v1")
        A("v_and_b32 v6, 7, v0"); A("v_lshlrev_b32 v6, 10, v6"); A("v_lshl_or_b32 v6, v3, 4, v6")
        A("v_lshlrev_b32 v7, 16, v3"); A("v_lshl_or_b32 v7, v2, 2, v7")
        A("v_and_b32 v4, 3, v0"); A("v_lshlrev_b32 v4, 10, v4")
        A("v_bfe_u32 v8, v0, 2, 2"); A("v_lshl_or_b32 v4, v8, 8, v4")
        A("v_lshl_or_b32 v4, v3, 4, v4")
        A("v_mov_b32 v8, -1"); A("v_mov_b32 v9, -1"); A("v_mov_b32 v10, -1"); A("v_mov_b32 v11, -1")
        A("s_lshl_b32 s22, s13, 10"); A("s_add_u32 s22, s22, s20")
        A("s_lshl_b32 s23, s13, 7")
        A("s_lshl_b32 s15, s13, 19"); A("s_lshl_b32 s24, s5, 10"); A("s_add_u32 s15, s15, s24")
        A("s_lshl_b32 s24, s8, 6"); A("s_add_u32 s15, s15, s24")
        A("s_lshl_b32 s14, s9, 3"); A("s_add_u32 s14, s14, s5"); A("s_lshl_b32 s14, s14, 21")
        A("s_lshl_b32 s24, s10, 18"); A("s_add_u32 s14, s14, s24")
        A("s_lshl_b32 s24, s13, 12"); A("s_add_u32 s14, s14, s24"); A(f"s_add_u32 s14, s14, {6144*256}")
        A("s_mov_b32 s16, 0x05040100"); A("s_mov_b32 s17, 0x07060302")
        A(f"s_mov_b32 s18, {hex(f32bits(128**-0.5 * 1.4426950408889634))}")
        A("s_waitcnt lgkmcnt(0)")
        s.stamp(1)
        for tau in range(2):
            s.vm(f"X{tau}", f"buffer_load_dwordx4 {vr(32+4*tau,4)}, v6, {srd(X_)}, s23 offen offset:{tau*64}")
        for tau in range(2):
            for i in range(8):
                s.vm(f"WQ{tau*8+i}", f"buffer_load_dword v{16+tau*8+i}, v7, {srd(WQ_)}, s15 offen {s.wnt}")
                if not (tau == 1 and i == 7):
                    A(f"s_add_u32 s15, s15, {8192 if i < 7 else 8192*25}")
        if s.tlbpf:
            s.vm("TV", f"buffer_load_dword v12, off, {srd(V_)}, s14 nt")
            A("s_lshl_b32 s24, s5, 19")
            s.vm("TW", f"buffer_load_dword v13, off, {srd(WO_)}, s24 nt")
            s.vm("TO", f"buffer_load_dword v14, off, {srd(OUT_)}, 0 nt")
            s.vm("TD", f"buffer_load_dword v15, off, {srd(DBG_)}, 0 offset:64 sc1")
        l = s.newlab()
        A("s_cmp_ge_u32 s13, 6"); A(f"s_cbranch_scc1 {l}")
        A(f"buffer_store_dwordx4 v[8:11], v5, {srd(WS_)}, s22 offen sc1")
        s.label(l)
        k = 0
        for k in range(s.N1): s.kload(k, gate=False)
        k = s.N1
        s.wait_for("TD" if s.tlbpf else "WQ15")
        s.stamp(2)
        for tau in range(2):
            for d in range(2):
                for kk in range(4):
                    A(f"v_perm_b32 v{40+tau*8+d*4+kk}, v{16+tau*8+2*kk+1}, v{16+tau*8+2*kk}, s{16+d}")
        A("s_nop 1")
        for tau in range(2):
            for d in range(2):
                c = "0" if tau == 0 else vr(56+4*d, 4)
                A(f"v_mfma_f32_16x16x32_bf16 {vr(56+4*d,4)}, {vr(32+4*tau,4)}, {vr(40+tau*8+d*4,4)}, {c}")
        A("s_lshl_b32 s22, s13, 11")
        A("v_add_u32 v8, s22, v5")
        A("s_nop 7")
        A(f"ds_write_b128 v8, v[56:59] offset:{LDS_QP}")
        A(f"ds_write_b128 v8, v[60:63] offset:{LDS_QP+1024}")
        A("s_waitcnt lgkmcnt(0)")
        A("s_barrier")
        l = s.newlab()
        A("s_cmp_lg_u32 s13, 0"); A(f"s_cbranch_scc1 {l}")
        A("v_lshrrev_b32 v8, 5, v1"); A("v_lshlrev_b32 v8, 13, v8")
        A("v_and_b32 v9, 31, v1"); A("v_lshl_or_b32 v8, v9, 4, v8")
        for ww in range(4):
            for d in range(2):
                A(f"ds_read_b128 {vr(16+(ww*2+d)*4,4)}, v8 offset:{LDS_QP+(ww*2+d)*1024}")
        A("v_and_b32 v9, 1, v3"); A("v_lshlrev_b32 v9, 15, v9")
        A("v_lshrrev_b32 v10, 1, v3"); A("v_lshl_or_b32 v9, v10, 14, v9"); A("v_lshl_or_b32 v9, v2, 2, v9")
        A("s_lshl_b32 s22, s4, 16"); A("s_lshl_b32 s23, s5, 10"); A("s_add_u32 s22, s22, s23")
        A("s_lshl_b32 s23, s8, 6"); A("s_add_u32 s22, s22, s23"); A("s_add_u32 s23, s22, 8192")
        A("s_waitcnt lgkmcnt(0)")
        for d in range(2):
            for r in range(4):
                a = 16 + d*4 + r
                A(f"v_add_f32 v{a}, v{a}, v{a+8}")
                A(f"v_add_f32 v{a+16}, v{a+16}, v{a+24}")
        for d in range(2):
            for r in range(4):
                a = 16 + d*4 + r
                A(f"v_add_f32 v{a}, v{a}, v{a+16}")
        A("s_nop 1")
        for d in range(2):
            for r in range(2):
                a = 16 + d*4 + r
                A(f"v_permlane32_swap_b32 v{a}, v{a+2}")
        A("s_nop 1")
        for d in range(2):
            for r in range(2):
                a = 16 + d*4 + r
                A(f"v_add_f32 v{a}, v{a}, v{a+2}")
        A("v_cvt_pk_bf16_f32 v10, v16, v20")
        A("v_cvt_pk_bf16_f32 v11, v17, v21")
        A(f"buffer_store_dword v10, v9, {srd(WS_)}, s22 offen sc1")
        A(f"buffer_store_dword v11, v9, {srd(WS_)}, s23 offen sc1")
        s.label(l)
        mark_q = len(s.ops)
        s.stamp(3)
        nslots = 32 + s.W
        flag_mark = q_mark = None
        for slot in range(k, nslots):
            if slot == s.ASLOT:
                l = s.newlab()
                A("s_cmp_lg_u32 s13, 0"); A(f"s_cbranch_scc1 {l}")
                A(f"s_waitcnt vmcnt({len(s.ops)-mark_q})")
                A("s_mov_b64 exec, 1")
                A("v_mov_b32 v8, 1"); A("s_lshl_b32 s22, s4, 7")
                A(f"buffer_atomic_add v8, off, {srd(DBG_)}, s22 sc1")
                A("s_mov_b64 exec, -1")
                s.stamp(4)
                s.label(l)
            if slot == s.FSLOT:
                l = s.newlab()
                A("s_cmp_lg_u32 s13, 1"); A(f"s_cbranch_scc1 {l}")
                A("s_lshl_b32 s22, s4, 7")
                A(f"buffer_load_dword v8, off, {srd(DBG_)}, s22 sc1")
                s.label(l)
                flag_mark = len(s.ops)
            if slot == s.FSLOT + s.W:
                l = s.newlab(); lr = s.newlab(); lok = s.newlab()
                A("s_cmp_lg_u32 s13, 1"); A(f"s_cbranch_scc1 {l}")
                A(f"s_waitcnt vmcnt({len(s.ops)-flag_mark})")
                A(f"s_mov_b32 s19, {s.spin}")
                s.label(lr)
                A("v_readfirstlane_b32 s23, v8")
                A("s_cmp_ge_u32 s23, 128"); A(f"s_cbranch_scc1 {lok}")
                A("s_sub_u32 s19, s19, 1"); A("s_cmp_eq_u32 s19, 0"); A(f"s_cbranch_scc1 {lok}")
                A("s_sleep 4")
                A(f"buffer_load_dword v8, off, {srd(DBG_)}, s22 sc1")
                A("s_waitcnt vmcnt(0)")
                A(f"s_branch {lr}")
                s.label(lok)
                s.stamp(4)
                A("s_lshl_b32 s22, s4, 16"); A("s_lshl_b32 s23, s9, 13"); A("s_add_u32 s22, s22, s23")
                A("s_lshl_b32 s23, s5, 10"); A("s_add_u32 s22, s22, s23")
                A(f"buffer_load_dwordx4 v[8:11], v5, {srd(WS_)}, s22 offen sc1")
                s.label(l)
                q_mark = len(s.ops)
            if slot < 32: s.kload(slot)
            else: s.vload(slot - 32)
        vnext = s.W
        l = s.newlab()
        A("s_cmp_lg_u32 s13, 1"); A(f"s_cbranch_scc1 {l}")
        A(f"s_waitcnt vmcnt({len(s.ops)-q_mark})")
        A(f"ds_write_b128 v5, v[8:11] offset:{LDS_QS}")
        A("s_waitcnt lgkmcnt(0)")
        s.label(l)
        A("v_lshrrev_b32 v8, 2, v2"); A("v_lshlrev_b32 v8, 8, v8"); A("v_lshl_or_b32 v8, v3, 4, v8")
        A("s_barrier")
        s.stamp(5)
        for t in range(4):
            A(f"ds_read_b128 {vr(80+4*t,4)}, v8 offset:{LDS_QS+t*64}")
        s.vload(vnext, gate=False); vnext += 1
        s.wait_for("K31")
        A("s_waitcnt lgkmcnt(0)")
        for T in range(8):
            for t in range(4):
                c = "0" if t == 0 else vr(96+4*T, 4)
                A(f"v_mfma_f32_16x16x32_bf16 {vr(96+4*T,4)}, {vr(s.kreg(T,t),4)}, {vr(80+4*t,4)}, {c}")
        s.vload(vnext, gate=False); vnext += 1
        A("s_nop 6")
        A("v_max3_f32 v8, v96, v97, v98"); A("v_max3_f32 v9, v99, v100, v101")
        rest = list(range(102, 128))
        i = 0
        while i + 1 < len(rest):
            dst = 8 + (i//2) % 2
            A(f"v_max3_f32 v{dst}, v{dst}, v{rest[i]}, v{rest[i+1]}"); i += 2
        A("v_max_f32 v8, v8, v9")
        A("v_mov_b32 v9, v8"); A("s_nop 1"); A("v_permlane32_swap_b32 v8, v9"); A("s_nop 1"); A("v_max_f32 v8, v8, v9")
        A("v_mov_b32 v9, v8"); A("s_nop 1"); A("v_permlane16_swap_b32 v8, v9"); A("s_nop 1"); A("v_max_f32 v8, v8, v9")
        A("v_mul_f32 v8, s18, v8")
        for r in range(96, 128):
            A(f"v_fma_f32 v{r}, v{r}, s18, -v8")
        s.vload(vnext, gate=False); vnext += 1
        for r in range(96, 128):
            A(f"v_exp_f32 v{r}, v{r}")
        s.vload(vnext, gate=False); vnext += 1
        A("v_add_f32 v9, v96, v97"); A("v_add_f32 v10, v98, v99"); A("v_add_f32 v11, v100, v101"); A("v_add_f32 v12, v102, v103")
        for r in range(104, 128):
            d = 9 + (r % 4)
            A(f"v_add_f32 v{d}, v{d}, v{r}")
        A("v_add_f32 v9, v9, v10"); A("v_add_f32 v11, v11, v12"); A("v_add_f32 v9, v9, v11")
        A("v_mov_b32 v10, v9"); A("s_nop 1"); A("v_permlane32_swap_b32 v9, v10"); A("s_nop 1"); A("v_add_f32 v9, v9, v10")
        A("v_mov_b32 v10, v9"); A("s_nop 1"); A("v_permlane16_swap_b32 v9, v10"); A("s_nop 1"); A("v_add_f32 v9, v9, v10")
        A("v_lshrrev_b32 v10, 2, v2"); A("v_lshlrev_b32 v10, 6, v10"); A("s_lshl_b32 s22, s13, 3"); A("v_add_u32 v10, s22, v10")
        A(f"ds_write_b64 v10, v[8:9] offset:{LDS_STAT}")
        for q in range(16):
            A(f"v_cvt_pk_bf16_f32 v{96+q}, v{96+2*q}, v{97+2*q}")
        s.stamp(6)
        ftmp = [80, 84, 88, 92, 112, 116, 120, 124]
        def pv_group(gam, waitfn):
            waitfn()
            for d in range(8):
                for kk in range(4):
                    a = s.vreg(gam*8 + 2*kk) + (d >> 1); b = s.vreg(gam*8 + 2*kk + 1) + (d >> 1)
                    A(f"v_perm_b32 v{ftmp[d]+kk}, v{b}, v{a}, s{16+(d&1)}")
                if d >= 1:
                    dd = d - 1
                    c = "0" if gam == 0 else vr(224+4*dd, 4)
                    A(f"v_mfma_f32_16x16x32_bf16 {vr(224+4*dd,4)}, {vr(96+4*gam,4)}, {vr(ftmp[dd],4)}, {c}")
            A("s_nop 1")
            c = "0" if gam == 0 else vr(224+28, 4)
            A(f"v_mfma_f32_16x16x32_bf16 {vr(224+28,4)}, {vr(96+4*gam,4)}, {vr(ftmp[7],4)}, {c}")
        for gam in range(3):
            last = gam*8 + 7
            while vnext <= min(31, last + s.W):
                s.vload(vnext); vnext += 1
            pv_group(gam, lambda: s.wait_for(f"V{last}"))
        A("v_lshlrev_b32 v10, 6, v3")
        A("s_lshl_b32 s22, s13, 3"); A("v_add_u32 v11, s22, v10")
        A("s_waitcnt lgkmcnt(0)")
        A("s_barrier")
        s.stamp(7)
        for q in range(4):
            A(f"ds_read_b128 {vr(16+4*q,4)}, v10 offset:{LDS_STAT+16*q}")
        A(f"ds_read_b32 v12, v11 offset:{LDS_STAT}")
        if vnext <= 31:
            s.vload(vnext); vnext += 1
        A("s_waitcnt lgkmcnt(0)")
        A("v_max3_f32 v8, v16, v18, v20"); A("v_max3_f32 v9, v22, v24, v26"); A("v_max3_f32 v8, v8, v28, v30"); A("v_max_f32 v8, v8, v9")
        for w in range(8): A(f"v_sub_f32 v{16+2*w}, v{16+2*w}, v8")
        A("v_sub_f32 v12, v12, v8")
        for w in range(8): A(f"v_exp_f32 v{16+2*w}, v{16+2*w}")
        A("v_exp_f32 v12, v12")
        A("v_mul_f32 v9, v16, v17")
        for w in range(1, 8): A(f"v_fma_f32 v9, v{16+2*w}, v{17+2*w}, v9")
        A("v_rcp_f32 v13, v9"); A("v_log_f32 v14, v9")
        A("s_nop 0")
        A("v_mul_f32 v12, v12, v13")
        A("v_add_f32 v14, v14, v8")
        l = s.newlab()
        A("s_cmp_lg_u32 s13, 5"); A(f"s_cbranch_scc1 {l}")
        A("v_lshlrev_b32 v10, 15, v3")
        A("s_lshl_b32 s22, s8, 2"); A("s_add_u32 s22, s22, s21"); A("s_add_u32 s22, s22, 5120")
        A("s_mov_b32 exec_lo, 0x00010001"); A("s_mov_b32 exec_hi, 0x00010001")
        A(f"buffer_store_dword v14, v10, {srd(WS_)}, s22 offen sc1")
        A("s_mov_b64 exec, -1")
        s.label(l)
        while vnext <= 31:
            s.vload(vnext); vnext += 1
        l = s.newlab()
        A("s_cmp_ge_u32 s13, 4"); A(f"s_cbranch_scc1 {l}")
        A("v_lshlrev_b32 v10, 13, v3"); A("v_lshl_or_b32 v10, v2, 2, v10")
        A("s_lshl_b32 s22, s5, 2"); A("s_add_u32 s22, s22, s11"); A("s_lshl_b32 s22, s22, 17")
        A("s_lshl_b32 s23, s12, 8"); A("s_add_u32 s22, s22, s23"); A("s_lshl_b32 s23, s13, 6"); A("s_add_u32 s22, s22, s23")
        for ks in range(4):
            for i in range(8):
                if i % 4 == 0 and (ks, i) != (0, 0):
                    A(f"s_add_u32 s22, s22, {4096 if i == 4 else 32768-4096}")
                A(f"buffer_load_dword v{192+ks*8+i}, v10, {srd(WO_)}, s22 offen offset:{(i&3)*1024} {s.wnt}")
        A("s_waitcnt vmcnt(32)")
        l2 = s.newlab()
        A(f"s_branch {l2}")
        s.label(l)
        A("s_waitcnt vmcnt(0)")
        s.label(l2)
        s.stamp(8)
        pv_group(3, lambda: None)
        A("s_lshl_b32 s22, s13, 11")
        A("v_lshlrev_b32 v10, 5, v1"); A("v_add_u32 v10, s22, v10")
        A("s_nop 5")
        for d in range(8):
            A(f"v_mul_f32 v{16+d}, v12, v{224+4*d}")
        A(f"ds_write_b128 v10, v[16:19] offset:{LDS_QP}")
        A(f"ds_write_b128 v10, v[20:23] offset:{LDS_QP+16}")
        A("s_waitcnt lgkmcnt(0)")
        A("s_barrier")
        s.stamp(9)
        A("s_cmp_lt_u32 s13, 4"); A("s_cbranch_scc1 L_proj")
        A("s_sub_u32 s22, s13, 4"); A("s_lshl_b32 s23, s22, 9")
        A("v_lshlrev_b32 v10, 3, v1"); A("v_add_u32 v10, s23, v10")
        for w in range(8):
            A(f"ds_read_b64 {vr(16+2*w,2)}, v10 offset:{LDS_QP+w*2048}")
        A("s_lshl_b32 s22, s22, 8"); A("s_add_u32 s22, s22, s20")
        A("v_lshlrev_b32 v11, 2, v1")
        A("s_waitcnt lgkmcnt(4)")
        A("v_add_f32 v16, v16, v18"); A("v_add_f32 v17, v17, v19"); A("v_add_f32 v20, v20, v22"); A("v_add_f32 v21, v21, v23")
        A("v_add_f32 v16, v16, v20"); A("v_add_f32 v17, v17, v21")
        A("s_waitcnt lgkmcnt(0)")
        A("v_add_f32 v24, v24, v26"); A("v_add_f32 v25, v25, v27"); A("v_add_f32 v28, v28, v30"); A("v_add_f32 v29, v29, v31")
        A("v_add_f32 v24, v24, v28"); A("v_add_f32 v25, v25, v29")
        A("v_add_f32 v16, v16, v24"); A("v_add_f32 v17, v17, v25")
        A("v_cvt_pk_bf16_f32 v16, v16, v17")
        A(f"buffer_store_dword v16, v11, {srd(WS_)}, s22 offen sc1")
        s.stamp(10)
        A("s_add_u32 s22, s20, 1024")
        A(f"s_mov_b32 s19, {s.spin}")
        A("v_and_b32 v10, 7, v1"); A("v_lshlrev_b32 v10, 3, v10"); A("v_lshl_or_b32 v10, v3, 1, v10")
        A("s_lshl_b32 s23, s5, 11"); A("s_lshl_b32 s24, s4, 10"); A("s_add_u32 s23, s23, s24")
        A("s_lshl_b32 s24, s12, 8"); A("s_add_u32 s23, s23, s24"); A("s_lshl_b32 s24, s11, 6"); A("s_add_u32 s23, s23, s24")
        A("s_barrier")
        A("s_cmp_lg_u32 s13, 4"); A("s_cbranch_scc1 L_fin")
        s.stamp(11)
        s.label("L_poll2")
        for q in range(4):
            A(f"buffer_load_dwordx4 {vr(16+4*q,4)}, v5, {srd(WS_)}, s22 offen offset:{q*1024} sc1")
        A("s_sub_u32 s19, s19, 1")
        A("s_waitcnt vmcnt(0)")
        A("v_max3_u32 v8, v16, v17, v18"); A("v_max3_u32 v9, v19, v20, v21")
        A("v_max3_u32 v8, v8, v22, v23"); A("v_max3_u32 v9, v9, v24, v25")
        A("v_max3_u32 v8, v8, v26, v27"); A("v_max3_u32 v9, v9, v28, v29")
        A("v_max3_u32 v8, v8, v30, v31"); A("v_max_u32 v8, v8, v9")
        A("v_cmp_eq_u32 vcc, -1, v8")
        A("s_cmp_eq_u32 s19, 0"); A("s_cbranch_scc1 L_got2")
        A("s_cbranch_vccnz L_poll2")
        s.label("L_got2")
        s.stamp(12)
        for c in range(4):
            A(f"v_add_f32 v{16+c}, v{16+c}, v{20+c}"); A(f"v_add_f32 v{24+c}, v{24+c}, v{28+c}")
        for c in range(4):
            A(f"v_add_f32 v{16+c}, v{16+c}, v{24+c}")
        A("s_nop 1")
        A("v_permlane32_swap_b32 v16, v18"); A("v_permlane32_swap_b32 v17, v19")
        A("s_nop 1")
        A("v_add_f32 v16, v16, v18"); A("v_add_f32 v17, v17, v19")
        A("s_nop 1")
        A("v_permlane16_swap_b32 v16, v17")
        A("s_nop 1")
        A("v_add_f32 v16, v16, v17")
        A("s_nop 1")
        A("v_add_f32_dpp v16, v16, v16 row_ror:8 row_mask:0xf bank_mask:0xf")
        A("v_cvt_pk_bf16_f32 v16, v16, v16")
        A(f"buffer_store_short v16, v10, {srd(OUT_)}, s23 offen")
        s.stamp(13)
        A("s_branch L_fin")
        s.label("L_proj")
        A("v_lshlrev_b32 v10, 13, v2"); A("v_lshl_or_b32 v10, v3, 4, v10")
        A("s_lshl_b32 s22, s11, 8"); A("s_add_u32 s22, s22, s21"); A("s_lshl_b32 s23, s13, 6"); A("s_add_u32 s22, s22, s23")
        A("v_lshlrev_b32 v11, 4, v3"); A("v_xor_b32 v13, 32, v11")
        A("s_lshl_b32 s23, s11, 15"); A("s_add_u32 s23, s23, s21"); A("s_add_u32 s23, s23, 5120")
        A(f"buffer_load_dwordx4 v[68:71], v11, {srd(WS_)}, s23 offen sc1")
        A(f"buffer_load_dwordx4 v[72:75], v13, {srd(WS_)}, s23 offen sc1")
        A(f"buffer_load_dwordx4 v[48:51], v10, {srd(WS_)}, s22 offen sc1")
        A(f"s_mov_b32 s19, {s.spin}")
        A("s_waitcnt vmcnt(3)")
        for ks in range(4):
            for d in range(2):
                for kk in range(4):
                    A(f"v_perm_b32 v{16+ks*8+d*4+kk}, v{192+ks*8+2*kk+1}, v{192+ks*8+2*kk}, s{16+d}")
        s.stamp(10)
        A("v_and_b32 v14, 1, v3"); A("v_lshlrev_b32 v14, 19, v14")
        A("v_lshrrev_b32 v15, 1, v3"); A("v_lshl_or_b32 v14, v15, 18, v14")
        A("v_lshl_or_b32 v14, v2, 3, v14")
        A("s_lshl_b32 s24, s4, 7"); A("s_lshl_b32 s25, s13, 2"); A("s_add_u32 s24, s24, s25"); A("s_add_u32 s24, s24, s12")
        A("s_lshl_b32 s24, s24, 13"); A(f"s_add_u32 s24, s24, {BLK+1024}")
        A("s_lshl_b32 s25, s5, 2"); A("s_add_u32 s25, s25, s11"); A("s_lshl_b32 s25, s25, 7"); A("s_add_u32 s24, s24, s25")
        A("s_add_u32 s25, s24, 0x20000")
        A("s_lshl_b32 s26, s13, 10"); A("v_add_u32 v15, s26, v5")
        s.label("L_poll1")
        A("s_waitcnt vmcnt(0)")
        A("v_max3_u32 v8, v48, v49, v50"); A("v_max3_u32 v9, v68, v69, v70")
        A("v_max3_u32 v8, v8, v51, v71"); A("v_max3_u32 v9, v9, v72, v73"); A("v_max3_u32 v8, v8, v74, v75"); A("v_max_u32 v8, v8, v9")
        A("v_cmp_eq_u32 vcc, -1, v8")
        A("s_cbranch_vccz L_got1")
        A("s_sub_u32 s19, s19, 1"); A("s_cmp_eq_u32 s19, 0"); A("s_cbranch_scc1 L_got1")
        A(f"buffer_load_dwordx4 v[68:71], v11, {srd(WS_)}, s23 offen sc1")
        A(f"buffer_load_dwordx4 v[72:75], v13, {srd(WS_)}, s23 offen sc1")
        A(f"buffer_load_dwordx4 v[48:51], v10, {srd(WS_)}, s22 offen sc1")
        A("s_branch L_poll1")
        s.label("L_got1")
        A(f"ds_write_b128 v15, v[48:51] offset:{LDS_AX}")
        for r in range(4): A(f"v_sub_f32 v{72+r}, v{72+r}, v{68+r}")
        for r in range(4): A(f"v_exp_f32 v{72+r}, v{72+r}")
        A("s_waitcnt lgkmcnt(0)")
        A("s_barrier")
        s.stamp(11)
        for ks in range(4):
            A(f"ds_read_b128 {vr(52+4*ks,4)}, v5 offset:{LDS_AX+ks*1024}")
        for r in range(4): A(f"v_add_f32 v{72+r}, 1.0, v{72+r}")
        for r in range(4): A(f"v_rcp_f32 v{72+r}, v{72+r}")
        for ks in range(4):
            A(f"s_waitcnt lgkmcnt({3-ks})")
            for d in range(2):
                c = "0" if ks == 0 else vr(76+4*d, 4)
                A(f"v_mfma_f32_16x16x32_bf16 {vr(76+4*d,4)}, {vr(52+4*ks,4)}, {vr(16+ks*8+d*4,4)}, {c}")
        A("s_nop 6")
        for d in range(2):
            for r in range(4):
                A(f"v_mul_f32 v{76+4*d+r}, v{72+r}, v{76+4*d+r}")
        A("s_nop 1")
        for d in range(2):
            for r in range(2):
                A(f"v_permlane32_swap_b32 v{76+4*d+r}, v{76+4*d+r+2}")
        A("s_nop 1")
        for r in range(2):
            for d in range(2):
                A(f"v_add_f32 v{84+2*r+d}, v{76+4*d+r}, v{76+4*d+r+2}")
        A(f"buffer_store_dwordx2 v[84:85], v14, {srd(WS_)}, s24 offen sc1")
        A(f"buffer_store_dwordx2 v[86:87], v14, {srd(WS_)}, s25 offen sc1")
        s.stamp(12)
        s.label("L_fin")
        if s.stamps:
            A("s_waitcnt vmcnt(0)")
            s.stamp(14)
            A("s_waitcnt lgkmcnt(0)")
            A("s_lshl_b32 s22, s2, 4"); A("s_add_u32 s22, s22, s13"); A("s_lshl_b32 s22, s22, 7"); A("s_add_u32 s22, s22, 0x10000000")
            A("s_mov_b64 exec, 1")
            if s.dbgst:
                A("s_not_b32 s64, s64")
                for j in range(15):
                    A(f"v_mov_b32 v6, s{64+2*j}")
                    A(f"buffer_atomic_umax v6, off, {srd(DBG_)}, 0 offset:{4+j*4} sc1")
                    A("s_nop 1")
            else:
              for j in range(15):
                A(f"v_mov_b32 v6, s{64+2*j}"); A(f"v_mov_b32 v7, s{65+2*j}")
                A(f"buffer_store_dwordx2 v[6:7], off, {srd(WS_)}, s22 offset:{j*8}")
                A("s_nop 1")
        s.label("L_end")
        A("s_endpgm")
        s.L += ['.section .rodata,"a"', ".p2align 6", f".amdhsa_kernel {KN}",
                "  .amdhsa_next_free_vgpr 256", "  .amdhsa_next_free_sgpr 102", "  .amdhsa_accum_offset 256",
                "  .amdhsa_group_segment_fixed_size 0", "  .amdhsa_kernarg_size 104", "  .amdhsa_user_sgpr_count 2",
                "  .amdhsa_user_sgpr_kernarg_segment_ptr 1", "  .amdhsa_system_sgpr_workgroup_id_x 1", ".end_amdhsa_kernel"]
        txt = "\n".join(s.L) + "\n"
        if s.stamps:
            init = "\n".join(f"    s_mov_b64 s[{64+2*j}:{65+2*j}], 0" for j in range(1, 15))
            txt = txt.replace(f"{KN}:\n", f"{KN}:\n{init}\n", 1)
        return txt

if __name__ == "__main__":
    from build import build
    open("k1.s", "w").write(G().gen()); build("k1.s")
    open("k1s.s", "w").write(G(stamps=True).gen()); build("k1s.s")
    for n, kw in dict(k1d=dict(dbgst=True), k1c=dict(codepf=True), k1t=dict(tlbpf=True), k1ct=dict(codepf=True, tlbpf=True), k1w8=dict(W=8, N1=8, FSLOT=16, ASLOT=12)).items():
        open(n + ".s", "w").write(G(**kw).gen()); build(n + ".s")
    print("ok")
```

```python
import sys
KN = "concat_heads__sliding_block_cached__sliding_block_cached__decode_kernel"
def gen(fn, sf='', lf='sc1', nw=2, nl=4, D=3, P=2, nwg=16, cross=False, private=False, atom=False):
    L = []; A = L.append
    A("; @launch grid=(256,1,1) block=(512,1,1) lds=0")
    A('.amdgcn_target "amdgcn-amd-amdhsa--gfx950"')
    A(".text"); A(f".globl {KN}"); A(".p2align 8"); A(f".type {KN},@function"); A(f"{KN}:")
    A("s_memrealtime s[64:65]")
    A("s_cmpk_ge_u32 s2, 256"); A("s_cbranch_scc1 L_end")
    A("s_load_dwordx2 s[48:49], s[0:1], 96")
    A("s_mov_b32 s50, 0x21000000"); A("s_mov_b32 s51, 0x20000")
    A("v_lshrrev_b32 v8, 6, v0"); A("v_and_b32 v1, 63, v0"); A("v_readfirstlane_b32 s13, v8")
    A("s_mov_b64 s[66:67], 0"); A("s_mov_b64 s[68:69], 0"); A("s_mov_b64 s[70:71], 0")
    if cross:
        A("s_lshr_b32 s3, s2, 4"); A("s_and_b32 s8, s2, 15")
    else:
        A("s_and_b32 s3, s2, 15"); A("s_lshr_b32 s8, s2, 4")
    A("s_lshl_b32 s20, s3, 12")
    A("v_lshlrev_b32 v2, 2, v1"); A("v_mov_b32 v3, -1"); A("v_mov_b32 v4, 7")
    A("v_bfe_u32 v5, v1, 4, 2"); A("v_lshlrev_b32 v5, 4, v5")
    A("s_waitcnt lgkmcnt(0)")
    A("s_cmp_lg_u32 s8, 0"); A("s_cbranch_scc1 L_cons")
    A("s_cmp_lg_u32 s13, 0"); A("s_cbranch_scc1 L_fin")
    for c in range(16 if private else 1):
        A(f"buffer_store_dword v3, v2, s[48:51], s20 offen offset:{c*256} sc1")
    A("L_d1:"); A("s_sleep 4"); A("s_memrealtime s[24:25]"); A("s_waitcnt lgkmcnt(0)"); A("s_sub_u32 s24, s24, s64"); A("s_cmpk_lt_u32 s24, 900"); A("s_cbranch_scc1 L_d1")
    A("s_memrealtime s[66:67]")
    for c in range(nwg if private else 1):
        A(f"buffer_store_dword v4, v2, s[48:51], s20 offen offset:{c*256} {sf}")
    A("s_waitcnt vmcnt(0)")
    A("s_memrealtime s[70:71]")
    A("s_branch L_fin")
    A("L_cons:")
    A(f"s_cmp_ge_u32 s8, {nwg}"); A("s_cbranch_scc1 L_fin")
    A(f"s_cmp_ge_u32 s13, {nw}"); A("s_cbranch_scc1 L_fin")
    if private:
        A("s_lshl_b32 s21, s8, 8"); A("s_add_u32 s20, s20, s21")
    A("L_d2:"); A("s_sleep 4"); A("s_memrealtime s[24:25]"); A("s_waitcnt lgkmcnt(0)"); A("s_sub_u32 s24, s24, s64"); A("s_cmpk_lt_u32 s24, 500"); A("s_cbranch_scc1 L_d2")
    A("s_mov_b32 exec_lo, 0x00010001"); A("s_mov_b32 exec_hi, 0x00010001")
    if atom:
        A("s_mov_b64 exec, 0xffff"); A("v_lshlrev_b32 v5, 3, v1")
        for k in range(nl): A(f"v_mov_b32 v{18+4*k}, 0x12345"); A(f"v_mov_b32 v{19+4*k}, 0x6789a")
    def poll():
        if atom:
            for k in range(nl): A(f"buffer_atomic_cmpswap_x2 v[{16+4*k}:{19+4*k}], v5, s[48:51], s20 offen offset:{k*128} sc0 sc1")
            return
        for k in range(nl): A(f"buffer_load_dwordx4 v[{16+4*k}:{19+4*k}], v5, s[48:51], s20 offen offset:{k*64} {lf}")
    poll(); A("s_waitcnt vmcnt(0)"); A("s_mov_b32 s19, 20000")
    A("L_poll:")
    A("v_max3_u32 v8, v16, v17, v18"); A("v_max_u32 v8, v8, v19")
    for k in range(1, nl):
        A(f"v_max3_u32 v8, v8, v{16+4*k}, v{17+4*k}"); A(f"v_max3_u32 v8, v8, v{18+4*k}, v{19+4*k}")
    A("v_cmp_eq_u32 vcc, -1, v8"); A("s_cbranch_vccz L_got")
    poll()
    if P: A(f"s_sleep {P}")
    A("s_sub_u32 s19, s19, 1"); A("s_cmp_eq_u32 s19, 0"); A(f"s_waitcnt vmcnt({nl*(D-1)})"); A("s_cbranch_scc0 L_poll")
    A("L_got:")
    A("s_memrealtime s[68:69]")
    A("L_fin:")
    A("s_waitcnt vmcnt(0) lgkmcnt(0)")
    A("L_d3:"); A("s_sleep 16"); A("s_memrealtime s[24:25]"); A("s_waitcnt lgkmcnt(0)"); A("s_sub_u32 s24, s24, s64"); A("s_cmpk_lt_u32 s24, 1500"); A("s_cbranch_scc1 L_d3")
    A("s_lshl_b32 s22, s2, 4"); A("s_add_u32 s22, s22, s13"); A("s_lshl_b32 s22, s22, 7"); A("s_add_u32 s22, s22, 0x10000000")
    A("s_mov_b64 exec, 1")
    for j in range(0, 4, 2):
        A(f"v_mov_b32 v8, s{64+2*j}"); A(f"v_mov_b32 v9, s{65+2*j}"); A(f"v_mov_b32 v10, s{66+2*j}"); A(f"v_mov_b32 v11, s{67+2*j}")
        A(f"buffer_store_dwordx4 v[8:11], off, s[48:51], s22 offset:{j*8}"); A("s_nop 1")
    A("L_end:"); A("s_endpgm")
    A('.section .rodata,"a"'); A(".p2align 6"); A(f".amdhsa_kernel {KN}")
    A("  .amdhsa_next_free_vgpr 256"); A("  .amdhsa_next_free_sgpr 102"); A("  .amdhsa_accum_offset 256")
    A("  .amdhsa_group_segment_fixed_size 0"); A("  .amdhsa_kernarg_size 104"); A("  .amdhsa_user_sgpr_count 2")
    A("  .amdhsa_user_sgpr_kernarg_segment_ptr 1"); A("  .amdhsa_system_sgpr_workgroup_id_x 1"); A(".end_amdhsa_kernel")
    open(fn, "w").write("\n".join(L) + "\n")
if __name__ == "__main__":
    from build import build
    b = dict(nw=1, private=True, sf='sc1', cross=True)
    cfgs = {"bd1": dict(nl=2, D=3, P=1, **b), "bd2": dict(nl=2, D=3, P=1, atom=True, **b), "bd3": dict(nl=2, D=4, P=2, atom=True, **b), "bd4": dict(nl=2, D=1, P=0, atom=True, **b), "bd5": dict(nl=2, D=6, P=1, atom=True, **b)}
    for k, c in cfgs.items():
        gen(k + ".s", **c); build(k + ".s")
    print(",".join(f'"bench/{k}.co"' for k in cfgs))
```
